```python
import torch

def _softmax(x, axis=-1):
    return torch.softmax(x, dim=axis)
def _gelu(x):
    return torch.nn.functional.gelu(x, approximate="tanh")
def _silu(x):
    return torch.nn.functional.silu(x)
def _sigmoid(x):
    return torch.sigmoid(x)
def _layernorm(x, axis=-1, eps=1e-5):
    m = x.mean(dim=axis, keepdim=True)
    v = x.var(dim=axis, keepdim=True, unbiased=False)
    return (x - m) / torch.sqrt(v + eps)
def _scatter_add(tgt, idx, src, axis=0):
    return tgt.clone().index_add_(axis, idx, src)
def _segment_sum(src, seg, n):
    out = torch.zeros((n,) + src.shape[1:], dtype=src.dtype)
    return out.index_add_(0, seg, src)
def _pad(x, pw):
    flat = tuple(v for pair in reversed(pw) for v in pair)
    return torch.nn.functional.pad(x, flat)

kernel_name = 'sequential_preLN__gqa_block_cached__swiglu_ffn__decode'

def setup_inputs():

    _w = (lambda a: (lambda t: t.to(torch.bfloat16) if t.is_floating_point() else t)(torch.as_tensor(a)))
    def _A_setup():
        B, Sq, D = 4, 1, 640
        Hq, Hkv, Sk, Dh = 32, 32, 4096, 192
        assert Hq % Hkv == 0, (Hq, Hkv)
        return {
            "x": _w((lambda *s: torch.randn(*s, dtype=torch.bfloat16) * 0.05)(B, Sq, D)),
            "k_cache": _w((lambda *s: torch.randn(*s, dtype=torch.bfloat16) * 3.2)(B, Hkv, Sk, Dh)),
            "v_cache": _w((lambda *s: torch.randn(*s, dtype=torch.bfloat16) * 0.4)(B, Hkv, Sk, Dh)),
            "wq": _w((lambda *s: torch.randn(*s, dtype=torch.bfloat16) * 3.2)(D, Hq * Dh) * (D ** -0.5)),
            "wo": _w((lambda *s: torch.randn(*s, dtype=torch.bfloat16) * 0.4)(Hq * Dh, D) * ((Hq * Dh) ** -0.5)),
        }
    _A_in = _A_setup()

    def _B_setup():
        B, S, D, F = 4, 1, 640, 1536
        return {
            "x": _w((lambda *s: torch.randn(*s, dtype=torch.bfloat16) * 0.05)(B, S, D)),
            "w_gate": _w((lambda *s: torch.randn(*s, dtype=torch.bfloat16) * 0.05)(D, F)),
            "w_up": _w((lambda *s: torch.randn(*s, dtype=torch.bfloat16) * 0.05)(D, F)),
            "w_down": _w((lambda *s: torch.randn(*s, dtype=torch.bfloat16) * 0.05)(F, D)),
        }
    _B_in = _B_setup()

    return {
        "A_x": _A_in["x"],
        "A_k_cache": _A_in["k_cache"],
        "A_v_cache": _A_in["v_cache"],
        "A_wq": _A_in["wq"],
        "A_wo": _A_in["wo"],
        "B_x": _B_in["x"],
        "B_w_gate": _B_in["w_gate"],
        "B_w_up": _B_in["w_up"],
        "B_w_down": _B_in["w_down"],
    }

def reference(A_x, A_k_cache, A_v_cache, A_wq, A_wo, B_x, B_w_gate, B_w_up, B_w_down):
    def _A_ref(x, k_cache, v_cache, wq, wo):
        B, Sq, D = x.shape
        Hq, Dh = 32, 192
        Hkv = k_cache.shape[1]
        rep = Hq // Hkv
        q = (lambda x, *d: x.permute(*d))((x @ wq).reshape(B, Sq, Hq, Dh), 0, 2, 1, 3)
        k = (lambda x, n, axis: torch.repeat_interleave(x, n, dim=axis))(k_cache, rep, axis=1)
        v = (lambda x, n, axis: torch.repeat_interleave(x, n, dim=axis))(v_cache, rep, axis=1)
        scores = torch.einsum("bhqd,bhkd->bhqk", q, k) * (Dh ** -0.5)
        p = _softmax(scores, axis=-1)
        o = torch.einsum("bhqk,bhkd->bhqd", p, v)
        return (lambda x, *d: x.permute(*d))(o, 0, 2, 1, 3).reshape(B, Sq, Hq * Dh) @ wo

    def _B_ref(x, w_gate, w_up, w_down):
        g = _silu(x @ w_gate)
        u = x @ w_up
        return (g * u) @ w_down

    x = A_x
    h = x + _A_ref(_layernorm(x, axis=-1), A_k_cache, A_v_cache, A_wq, A_wo)
    h2 = h + _B_ref(_layernorm(h, axis=-1), B_w_gate, B_w_up, B_w_down)
    return h2
```

```python
import re

TRANS = ("v_exp_f32", "v_log_f32", "v_rcp_f32", "v_rsq_f32", "v_sqrt_f32", "v_sin_f32", "v_cos_f32")

def regs_of(tok):
    tok = tok.strip()
    tok = tok.lstrip("-")
    m = re.fullmatch(r"abs\((.*)\)", tok)
    if m: tok = m.group(1)
    m = re.fullmatch(r"\|(.*)\|", tok)
    if m: tok = m.group(1)
    m = re.fullmatch(r"([vsa])(\d+)", tok)
    if m: return {(m.group(1), int(m.group(2)))}
    m = re.fullmatch(r"([vsa])\[(\d+):(\d+)\]", tok)
    if m: return {(m.group(1), i) for i in range(int(m.group(2)), int(m.group(3)) + 1)}
    if tok in ("vcc", "vcc_lo", "vcc_hi"): return {("s", "vcc")}
    if tok in ("exec", "exec_lo", "exec_hi"): return {("s", "exec")}
    if tok == "m0": return {("s", "m0")}
    return set()

class Inst:
    def __init__(self, text):
        self.text = text
        t = text.split(";")[0].strip()
        parts = t.split(None, 1)
        self.mn = parts[0]
        rest = parts[1] if len(parts) > 1 else ""
        ops = [o.strip() for o in rest.split(",")] if rest else []
        self.mods = ""
        if ops:
            m = re.search(r"\s(quad_perm|row_|offen|offset|idxen|sc0|sc1|nt|lds|op_sel|neg_|clamp|mul:|div:|bank_mask|cbsz|abid|blgp|bound_ctrl|wave_)", " " + rest)
            if m:
                pos = m.start()
                opstr = rest[:pos]; self.mods = rest[pos:]
            else:
                opstr = rest
            ops = [o.strip() for o in opstr.split(",") if o.strip()]
        self.ops = ops
        mn = self.mn
        self.valu = mn.startswith("v_") and not mn.startswith("v_mfma")
        self.mfma = mn.startswith("v_mfma")
        self.dpp = ("quad_perm" in self.mods or "row_" in self.mods or "wave_" in self.mods) and self.valu
        self.perml = mn.startswith("v_permlane")
        self.rdl = mn.startswith("v_readlane") or mn.startswith("v_readfirstlane")
        self.trans = any(mn.startswith(x) for x in TRANS)
        self.dot = mn.startswith("v_dot")
        self.vmem = mn.startswith("buffer_") or mn.startswith("global_")
        self.ds = mn.startswith("ds_")
        self.salu = mn.startswith("s_")
        R = [regs_of(o) for o in ops]
        self.w = set(); self.r = set()
        if self.valu or self.mfma:
            if self.perml:
                self.w = R[0] | R[1]; self.r = R[0] | R[1]
            else:
                ndst = 1
                if re.match(r"v_(add|sub|subrev|addc|subb)_co", mn) or mn.startswith("v_div_scale") or mn.startswith("v_mad_u64"): ndst = 2
                for x in R[:ndst]: self.w |= x
                for x in R[ndst:]: self.r |= x
                if mn.startswith("v_dot2c") or mn.startswith("v_fmac") or self.dpp and "bank_mask:0xf" not in self.mods:
                    self.r |= R[0]
                if mn.startswith("v_cndmask") and len(ops) == 3: self.r |= {("s", "vcc")}
                if mn.startswith("v_cmpx"): self.w |= {("s", "exec")}
            self.srcC = R[3] if self.mfma else (R[0] if mn.startswith("v_dot2c") else (R[3] if self.dot and len(R) > 3 else set()))
            self.srcAB = (R[1] | R[2]) if (self.mfma or self.dot) else set()
        elif self.vmem:
            if "load" in mn and " lds" not in (" " + self.mods + " ").replace("\t", " ") :
                self.w = R[0]
                for x in R[1:]: self.r |= x
                if "d16" in mn: self.r |= R[0]
            else:
                for x in R: self.r |= x
                if "atomic" in mn and "sc0" in self.mods: self.w = R[0]
                if "load" in mn: self.r |= {("s", "m0")}
            self.widestore = ("store" in mn and ("x3" in mn or "x4" in mn))
            self.data = R[0] if "store" in mn else set()
        elif self.ds:
            if mn.startswith("ds_read") or "rtn" in mn or "permute" in mn or "swizzle" in mn:
                self.w = R[0]
                for x in R[1:]: self.r |= x
                if "d16" in mn: self.r |= R[0]
            else:
                for x in R: self.r |= x
        elif self.salu:
            if mn.startswith("s_cmp") or mn.startswith("s_cbranch") or mn in ("s_waitcnt", "s_nop", "s_barrier", "s_branch", "s_sleep", "s_endpgm", "s_setprio"):
                for x in R: self.r |= x
            else:
                if R: self.w = R[0]
                for x in R[1:]: self.r |= x
                if "saveexec" in mn: self.w |= {("s", "exec")}
        self.states = 1
        if mn == "s_nop": self.states = int(ops[0], 0) + 1

def vset(s): return {x for x in s if x[0] in ("v", "a")}
def sset(s): return {x for x in s if x[0] == "s"}

def mfma_passes(mn):
    if "32x32x16" in mn or "32x32x8" in mn: return 8
    if "16x16x32" in mn or "16x16x16" in mn: return 4
    raise ValueError(mn)

def need(p, c):
    n = 0
    pv = vset(p.w); ps = sset(p.w)
    if p.valu:
        if c.dpp and pv & vset(c.r): n = max(n, 2)
        if c.perml and pv & vset(c.r): n = max(n, 2)
        if c.rdl and pv & vset(c.r): n = max(n, 1)
        if p.trans and (c.valu or c.mfma) and not c.trans and pv & vset(c.r | c.w): n = max(n, 1)
        if p.trans and c.trans and pv & vset(c.r): n = max(n, 1)
        if c.mfma and pv & vset(c.r): n = max(n, 2)
        if ps:
            if (c.valu or c.mfma) and ps & sset(c.r): n = max(n, 4 if c.rdl or c.mn.startswith("v_writelane") else 2)
            if c.vmem and ps & sset(c.r): n = max(n, 5)
            if c.salu and ps & sset(c.r): n = max(n, 2)
            if ("s", "exec") in ps and (c.valu or c.mfma): n = max(n, 5)
            if ("s", "vcc") in ps and c.mn.startswith("s_cbranch_vcc"): n = max(n, 5)
        if p.dot:
            if c.dot and c.mn == p.mn:
                if pv & vset(c.srcAB): n = max(n, 3)
            elif pv & vset(c.r | c.w): n = max(n, 3)
    if p.mfma:
        ps_ = mfma_passes(p.mn)
        far = {4: 8, 8: 12}[ps_]
        if c.mfma:
            if pv & vset(c.srcAB): n = max(n, far)
            if pv & vset(c.srcC) and not (pv == vset(c.srcC) and c.mn == p.mn): n = max(n, {4: 6, 8: 10}[ps_])
        elif (c.valu or c.vmem or c.ds) and pv & vset(c.r | c.w): n = max(n, far)
        if c.valu and vset(p.srcC) & vset(c.w): n = max(n, {4: 3, 8: 7}[ps_])
    if p.vmem and getattr(p, "widestore", False):
        if vset(p.data) & vset(c.w): n = max(n, 2)
    if p.salu and ("s", "m0") in p.w and c.vmem and ("s", "m0") in c.r: n = max(n, 1)
    return n

class Asm:
    def __init__(self):
        self.lines = []
        self.hist = []
        self.nops_added = 0
    def _emit(self, text, count=True):
        ins = Inst(text)
        dist = 0; pad = 0
        for p, cnt in reversed(self.hist[-24:]):
            nd = need(p, ins)
            if nd > dist: pad = max(pad, nd - dist)
            if cnt: dist += p.states
            if dist >= 20: break
        if pad > 0:
            t = f"s_nop {pad-1}"
            self.lines.append("    " + t); self.hist.append((Inst(t), True)); self.nops_added += 1
        self.lines.append("    " + text)
        self.hist.append((ins, count))
    def __call__(self, s, count=True):
        for l in s.strip("\n").split("\n"):
            l = l.strip()
            if not l: continue
            if l.startswith(";"): self.lines.append("    " + l); continue
            if l.endswith(":"): self.label(l[:-1]); continue
            self._emit(l, count)
    def label(self, n, fence=True):
        if fence:
            self._emit("s_nop 7"); self._emit("s_nop 3")
        self.lines.append(n + ":")
        if fence: self.hist = []
    def c(self, s): self.lines.append("    ; " + s)
    def text(self): return "\n".join(self.lines) + "\n"
```

```python
import sys, math, struct
from hz import Asm
from asmlib import kernel_text, build

KNAME = "sequential_preLN__gqa_block_cached__swiglu_ffn__decode_kernel"

def f2u(x): return struct.unpack("<I", struct.pack("<f", x))[0]

class Cfg:
    P0 = 4
    P = 2
    K_EVEN = 1
    K_ODD = 0
    R = 4
    diag = False
    stage = 3
    SPIN = 400000

WS_ATT = 0
WS_STATS = 65536
WS_FFN = 131072
WS_DBG = 2 << 20
WS_SIZE = 4 << 20
L_XN = 0
L_QACC = 10240
L_OACC = 11008
L_YEX = 11776
L_GU = 12288
L_CNT = 12800
L_FIN = 13056
L_ZEND = 14336
L_HN = 14336
L_H = 19456
L_WD = 32768
L_WGU = 57344
LDS_BYTES = 98304
NFFN = 96
NRED = 40
sK, sV, sWQ, sWO, sX, sWS, sDBG, sGU, sWD, sOUT = 4, 8, 12, 16, 20, 24, 28, 32, 36, 40
ACC = 16; Q = 40; SC = 52; WO = 84; TMP = 204; KB = 208

def gen(cfg):
    a = Asm()
    ops = []
    def vm(text, tag=None):
        a(text); ops.append(tag)
    def wait_tag(tag, extra=0):
        idx = max(i for i, t in enumerate(ops) if t == tag)
        n = len(ops) - 1 - idx
        return min(63, max(0, n - extra))
    def srd(base, ptr, size):
        a(f"s_mov_b32 s{base}, s{ptr}\ns_mov_b32 s{base+1}, s{ptr+1}\ns_mov_b32 s{base+2}, {size}\ns_mov_b32 s{base+3}, 0x00020000")
    stamps = []
    def stamp(i):
        if cfg.diag:
            a(f"s_memrealtime s[{88+2*(i%2)}:{89+2*(i%2)}]\ns_waitcnt lgkmcnt(0)\nv_writelane_b32 v15, s{88+2*(i%2)}, {i}")
    def allreduce_rg(op, r, t1, t2):
        a(f"{op}_dpp v{r}, v{r}, v{r} row_ror:8 row_mask:0xf bank_mask:0xf")
        a(f"v_mov_b32 v{t1}, v{r}\nv_mov_b32 v{t2}, v{r}\nv_permlane16_swap_b32 v{t1}, v{t2}\n{op} v{r}, v{t1}, v{t2}")
        a(f"v_mov_b32 v{t1}, v{r}\nv_mov_b32 v{t2}, v{r}\nv_permlane32_swap_b32 v{t1}, v{t2}\n{op} v{r}, v{t1}, v{t2}")
    def allreduce_row(op, r):
        a(f"{op}_dpp v{r}, v{r}, v{r} quad_perm:[1,0,3,2] row_mask:0xf bank_mask:0xf")
        a(f"{op}_dpp v{r}, v{r}, v{r} quad_perm:[2,3,0,1] row_mask:0xf bank_mask:0xf")
        a(f"{op}_dpp v{r}, v{r}, v{r} row_half_mirror row_mask:0xf bank_mask:0xf")
        a(f"{op}_dpp v{r}, v{r}, v{r} row_mirror row_mask:0xf bank_mask:0xf")
    def allreduce_wave(op, r, t1, t2):
        allreduce_row(op, r)
        a(f"v_mov_b32 v{t1}, v{r}\nv_mov_b32 v{t2}, v{r}\nv_permlane16_swap_b32 v{t1}, v{t2}\n{op} v{r}, v{t1}, v{t2}")
        a(f"v_mov_b32 v{t1}, v{r}\nv_mov_b32 v{t2}, v{r}\nv_permlane32_swap_b32 v{t1}, v{t2}\n{op} v{r}, v{t1}, v{t2}")
    def reduce_scatter(base, n):
        h = n // 2
        for i in range(h): a(f"v_permlane32_swap_b32 v{base+i}, v{base+i+h}")
        for i in range(h): a(f"v_add_f32 v{base+i}, v{base+i}, v{base+i+h}")
        h //= 2
        for i in range(h): a(f"v_permlane16_swap_b32 v{base+i}, v{base+i+h}")
        for i in range(h): a(f"v_add_f32 v{base+i}, v{base+i}, v{base+i+h}")
        h //= 2
        for i in range(h): a(f"v_add_f32_dpp v{base+i}, v{base+i}, v{base+i} row_ror:8 row_mask:0xf bank_mask:0x3")
        for i in range(h): a(f"v_add_f32_dpp v{base+i}, v{base+i+h}, v{base+i+h} row_ror:8 row_mask:0xf bank_mask:0xc")
    def layernorm10(X, t, eps=1e-5):
        s, u1, u2, d = t, t + 1, t + 2, t + 3
        a(f"v_add_f32 v{s}, v{X}, v{X+1}")
        for i in range(2, 10): a(f"v_add_f32 v{s}, v{s}, v{X+i}")
        allreduce_wave("v_add_f32", s, u1, u2)
        a(f"v_mul_f32 v{s}, {hex(f2u(1.0/640))}, v{s}")
        for i in range(10): a(f"v_sub_f32 v{X+i}, v{X+i}, v{s}")
        a(f"v_mul_f32 v{d}, v{X}, v{X}")
        for i in range(1, 10): a(f"v_fmac_f32 v{d}, v{X+i}, v{X+i}")
        allreduce_wave("v_add_f32", d, u1, u2)
        a(f"v_mov_b32 v{u1}, {hex(f2u(eps))}\nv_fmac_f32 v{u1}, {hex(f2u(1.0/640))}, v{d}\nv_rsq_f32 v{u1}, v{u1}")
        for i in range(10): a(f"v_mul_f32 v{X+i}, v{X+i}, v{u1}")
    def spin(name, off, target):
        a(f"s_mov_b32 s60, {cfg.SPIN}\nv_mov_b32 v7, {off}")
        a.label(f"L_{name}")
        a(f"""buffer_load_dword v8, v7, s[{sDBG}:{sDBG+3}], 0 offen sc1
        s_waitcnt vmcnt(0)
        v_readfirstlane_b32 s58, v8
        s_cmp_eq_u32 s58, {target}
        s_cbranch_scc1 L_{name}_done
        s_sleep 1
        s_sub_u32 s60, s60, 1
        s_cmp_lg_u32 s60, 0
        s_cbranch_scc1 L_{name}""")
        a.label(f"L_{name}_done")

    a(f"""
    s_cmp_ge_u32 s2, 256
    s_cbranch_scc1 L_end
    s_load_dwordx16 s[64:79], s[0:1], 0
    s_load_dwordx8 s[80:87], s[0:1], 64
    s_getreg_b32 s61, hwreg(HW_REG_XCC_ID)
    v_lshrrev_b32 v7, 6, v0
    v_and_b32 v1, 63, v0
    v_readfirstlane_b32 s3, v7
    v_lshrrev_b32 v2, 3, v1
    v_and_b32 v3, 7, v1
    v_lshlrev_b32 v7, 4, v3
    v_mov_b32 v8, 384
    v_mad_u32_u24 v4, v2, v8, v7
    v_mov_b32 v8, 12288
    v_mad_u32_u24 v5, v2, v8, v7
    v_mov_b32 v8, 10240
    v_mad_u32_u24 v6, v2, v8, v7
    v_lshlrev_b32 v9, 2, v1
    s_and_b32 s50, s2, 7
    s_lshr_b32 s51, s2, 3
    s_lshl_b32 s44, s50, 2
    s_and_b32 s58, s51, 3
    s_add_u32 s44, s44, s58
    s_lshr_b32 s58, s51, 2
    s_lshr_b32 s45, s58, 1
    s_and_b32 s46, s58, 1
    s_lshl_b32 s47, s45, 5
    s_add_u32 s47, s47, s44
    s_mov_b32 s52, 0x05040100
    s_mov_b32 s53, 0x07060302
    s_mov_b32 s54, {hex(f2u(192 ** -0.5 * math.log2(math.e)))}
    """)
    if cfg.diag:
        a("v_mov_b32 v15, 0")
    a(f"""
    s_lshl_b32 s49, s47, 4
    s_lshl_b32 s58, s46, 3
    s_add_u32 s49, s49, s58
    s_add_u32 s49, s49, s3
    s_mul_i32 s49, s49, {256*384}
    s_mul_i32 s59, s45, 1280
    s_mul_i32 s55, s3, {80*12288}
    s_mul_i32 s58, s44, 384
    s_add_u32 s55, s55, s58
    s_and_b32 s61, s61, 1
    s_waitcnt lgkmcnt(0)
    """)
    stamp(0)
    srd(sX, 64, 5120)
    srd(sWQ, 70, 640 * 6144 * 2)
    srd(sK, 66, 201326592)
    for i in range(5):
        vm(f"buffer_load_dword v{SC+20+i}, v9, s[{sX}:{sX+3}], s59 offen offset:{256*i}", "x")
    for t in range(10):
        if t: a(f"s_add_u32 s55, s55, {8*12288}")
        for j in range(3):
            r = WO + 12 * t + 4 * j
            vm(f"buffer_load_dwordx4 v[{r}:{r+3}], v5, s[{sWQ}:{sWQ+3}], s55 offen offset:{128*j}", f"wq{t}")
    a("s_mov_b32 s48, s49")
    nissued = [0]
    def issue_period():
        t = nissued[0]
        if t >= 64: return
        if t == 32: a("s_mov_b32 s48, s49")
        s = sK if t < 32 else sV
        slot = t % cfg.P0
        for j in range(3):
            r = KB + 12 * slot + 4 * j
            vm(f"buffer_load_dwordx4 v[{r}:{r+3}], v4, s[{s}:{s+3}], s48 offen offset:{128*j} nt", f"p{t}")
        a("s_add_u32 s48, s48, 3072")
        nissued[0] += 1
    for t in range(cfg.P0): issue_period()
    srd(sV, 68, 201326592)
    srd(sWO, 72, 6144 * 640 * 2)
    srd(sWS, 86, WS_SIZE)
    srd(sDBG, 84, 256)
    a(f"""
    s_lshl_b32 s58, s2, 3
    s_add_u32 s58, s58, s3
    s_lshl_b32 s58, s58, 5
    v_mov_b32 v{TMP}, 0
    v_mov_b32 v{TMP+1}, 0
    v_mov_b32 v{TMP+2}, 0
    v_mov_b32 v{TMP+3}, 0
    v_lshlrev_b32 v7, 4, v1
    s_mov_b64 exec, 3
    """)
    vm(f"buffer_store_dwordx4 v[{TMP}:{TMP+3}], v7, s[{sWS}:{sWS+3}], s58 offen offset:{WS_ATT} sc1", "zero")
    a(f"""
    s_mov_b64 exec, -1
    v_lshlrev_b32 v7, 3, v0
    ds_write_b64 v7, v[{TMP}:{TMP+1}] offset:{L_QACC}
    s_cmp_eq_u32 s61, 0
    s_cselect_b64 vcc, -1, 0
    """)
    for i in range(24): a(f"v_mov_b32 v{ACC+i}, 0")
    a(f"s_waitcnt vmcnt({wait_tag('x')})")
    X = SC + 10
    for i in range(5):
        a(f"v_lshlrev_b32 v{X+2*i}, 16, v{SC+20+i}\nv_and_b32 v{X+2*i+1}, 0xffff0000, v{SC+20+i}")
    layernorm10(X, SC + 26)
    a(f"s_mul_i32 s58, s3, 1280\nv_add_u32 v7, s58, v9")
    for i in range(5):
        a(f"v_cvt_pk_bf16_f32 v{SC+20+i}, v{X+2*i}, v{X+2*i+1}\nds_write_b32 v7, v{SC+20+i} offset:{L_XN+256*i}")
    a(f"s_mul_i32 s58, s3, 1440\nv_lshlrev_b32 v7, 1, v2\nv_add_u32 v7, s58, v7\ns_waitcnt lgkmcnt(0)\ns_barrier")
    for t in range(10): a(f"ds_read_u16 v{SC+t}, v7 offset:{L_XN+16*t}")
    a("s_waitcnt lgkmcnt(0)")
    for t in range(10): a(f"v_lshlrev_b32 v{SC+10+t}, 16, v{SC+t}")
    a(f"""
    s_mul_i32 s56, s44, {192*1280}
    s_lshl_b32 s58, s3, 7
    s_add_u32 s57, s56, s58
    s_lshr_b32 s58, s3, 2
    s_lshl_b32 s58, s58, 7
    s_add_u32 s56, s56, s58
    s_add_u32 s56, s56, 1024
    s_and_b32 s62, s3, 3
    s_mul_i32 s62, s62, 6
    """)
    def issue_wo(n):
        r = WO + 4 * n
        if n < 24:
            j, e = n // 8, n % 8
            a(f"s_add_u32 s58, s57, {(64*j+e)*1280}")
        else:
            i = n - 24
            a(f"""s_add_u32 s58, s62, {i}
            s_lshr_b32 s59, s58, 3
            s_and_b32 s58, s58, 7
            s_lshl_b32 s59, s59, 6
            s_add_u32 s58, s58, s59
            s_mul_i32 s58, s58, 1280
            s_add_u32 s58, s58, s56""")
        vm(f"buffer_load_dwordx4 v[{r}:{r+3}], v6, s[{sWO}:{sWO+3}], s58 offen", "wo")
    for t in range(10):
        a(f"s_waitcnt vmcnt({wait_tag(f'wq{t}')})")
        for i in range(12):
            a(f"v_dot2c_f32_bf16 v{ACC+2*i}, v{WO+12*t+i}, v{SC+t}")
            a(f"v_dot2c_f32_bf16 v{ACC+2*i+1}, v{WO+12*t+i}, v{SC+10+t}")
        if cfg.stage >= 2:
            for j in range(3): issue_wo(3 * t + j)
    reduce_scatter(ACC, 24)
    a(f"v_mul_u32_u24 v7, 96, v3\nv_mul_u32_u24 v8, 12, v2\nv_add_u32 v10, v7, v8")
    for i in range(3): a(f"ds_add_f32 v10, v{ACC+i} offset:{L_QACC+4*i}")
    a("s_waitcnt lgkmcnt(0)\ns_barrier")
    for i in range(6): a(f"ds_read_b128 v[{ACC+4*i}:{ACC+4*i+3}], v7 offset:{L_QACC+16*i}")
    a("s_waitcnt lgkmcnt(0)")
    for i in range(12): a(f"v_cvt_pk_bf16_f32 v{Q+i}, v{ACC+2*i}, v{ACC+2*i+1}")
    for i in range(24): a(f"v_mov_b32 v{ACC+i}, 0")
    stamp(1)
    kmax = max(cfg.K_EVEN, cfg.K_ODD); kmin = min(cfg.K_EVEN, cfg.K_ODD)
    lbl = [0]
    def wait_period(t):
        n_hi = wait_tag(f"p{t}", kmin); n_lo = wait_tag(f"p{t}", kmax)
        if n_lo != n_hi:
            br = "s_cbranch_vccz" if cfg.K_EVEN > cfg.K_ODD else "s_cbranch_vccnz"
            lbl[0] += 1
            a(f"{br} L_w{lbl[0]}")
            a(f"s_waitcnt vmcnt({n_lo})", count=False)
            a.label(f"L_w{lbl[0]}", fence=False)
        a(f"s_waitcnt vmcnt({n_hi})")
    wo_loc = {(n, k): WO + 4 * n + k for n in range(30) for k in range(4)}
    spare = [TMP]
    perm_jobs = [(u, k) for u in range(15) for k in range(4)]
    plo = {}; phi = {}
    def do_perm(cnt):
        for _ in range(cnt):
            if not perm_jobs: return
            u, k = perm_jobs.pop(0)
            A = wo_loc[(2 * u, k)]; B = wo_loc[(2 * u + 1, k)]; T = spare[0]
            a(f"v_perm_b32 v{T}, v{B}, v{A}, s52\nv_perm_b32 v{B}, v{B}, v{A}, s53")
            plo[(u, k)] = T; phi[(u, k)] = B; spare[0] = A
    for t in range(32):
        wait_period(t)
        slot = t % cfg.P0
        a(f"v_mov_b32 v{SC+t}, 0")
        for i in range(12): a(f"v_dot2c_f32_bf16 v{SC+t}, v{KB+12*slot+i}, v{Q+i}")
        while nissued[0] < t + 1 + cfg.P and nissued[0] < t + cfg.P0 + 1: issue_period()
        a(f"v_add_f32_dpp v{SC+t}, v{SC+t}, v{SC+t} quad_perm:[1,0,3,2] row_mask:0xf bank_mask:0xf")
        a(f"v_add_f32_dpp v{SC+t}, v{SC+t}, v{SC+t} quad_perm:[2,3,0,1] row_mask:0xf bank_mask:0xf")
        a(f"v_add_f32_dpp v{SC+t}, v{SC+t}, v{SC+t} row_half_mirror row_mask:0xf bank_mask:0xf")
        if cfg.stage >= 2 and t >= 12: do_perm(3)
    stamp(2)
    a(f"v_max3_f32 v11, v{SC}, v{SC+1}, v{SC+2}")
    for i in range(3, 31, 2): a(f"v_max3_f32 v11, v11, v{SC+i}, v{SC+i+1}")
    a(f"v_max_f32 v11, v11, v{SC+31}")
    allreduce_rg("v_max_f32", 11, 7, 8)
    a("v_mul_f32 v12, s54, v11")
    for t in range(32):
        a(f"v_fma_f32 v{SC+t}, v{SC+t}, s54, -v12")
    for t in range(32):
        a(f"v_exp_f32 v{SC+t}, v{SC+t}")
    a(f"v_add_f32 v13, v{SC}, v{SC+1}")
    for t in range(2, 32): a(f"v_add_f32 v13, v13, v{SC+t}")
    allreduce_rg("v_add_f32", 13, 7, 8)
    a(f"""
    s_lshl_b32 s58, s47, 4
    s_lshl_b32 s59, s46, 3
    s_add_u32 s58, s58, s59
    s_add_u32 s58, s58, s3
    s_lshl_b32 s58, s58, 3
    s_add_u32 s58, s58, {WS_STATS}
    v_mov_b32 v7, 0
    s_mov_b64 exec, 1
    """)
    vm(f"buffer_store_dwordx2 v[12:13], v7, s[{sWS}:{sWS+3}], s58 offen sc1", "stat")
    a("s_mov_b64 exec, -1")
    T_SIG = 32 + cfg.P + 2
    T_POLL = 56; T_CHK = T_POLL + cfg.P + 2
    for t in range(32, 64):
        wait_period(t)
        slot = t % cfg.P0
        a(f"v_cvt_pk_bf16_f32 v7, v{SC+t-32}, 0\nv_cvt_pk_bf16_f32 v8, 0, v{SC+t-32}")
        for i in range(12):
            a(f"v_dot2c_f32_bf16 v{ACC+2*i}, v{KB+12*slot+i}, v7")
            a(f"v_dot2c_f32_bf16 v{ACC+2*i+1}, v{KB+12*slot+i}, v8")
        while nissued[0] < t + 1 + cfg.P and nissued[0] < 64: issue_period()
        if cfg.stage >= 2: do_perm(3)
        if t == T_SIG:
            assert ops.index("stat") < ops.index(f"p{t}")
            a(f"""
            v_mov_b32 v7, {L_CNT}
            v_mov_b32 v8, 1
            s_mov_b64 exec, 1
            ds_add_rtn_u32 v9, v7, v8
            s_waitcnt lgkmcnt(0)
            v_readfirstlane_b32 s58, v9
            s_cmp_lg_u32 s58, 7
            s_cbranch_scc1 L_nosig0
            v_mov_b32 v7, 0
            buffer_atomic_add v8, v7, s[{sDBG}:{sDBG+3}], 0 offen
            """)
            a.label("L_nosig0")
            a("s_mov_b64 exec, -1")
        if t == T_POLL:
            a("v_mov_b32 v7, 0")
            vm(f"buffer_load_dword v14, v7, s[{sDBG}:{sDBG+3}], 0 offen sc1", "zpoll")
        if t == T_CHK:
            assert ops.index("zpoll") < ops.index(f"p{t}")
            a(f"v_readfirstlane_b32 s58, v14\ns_cmp_eq_u32 s58, 256\ns_cbranch_scc1 L_zok")
            spin("zspin", 0, 256)
            a.label("L_zok")
            a(f"""
            s_lshl_b32 s58, s47, 7
            s_add_u32 s58, s58, {WS_STATS}
            v_and_b32 v7, 15, v1
            v_lshlrev_b32 v7, 3, v7
            """)
            vm(f"buffer_load_dwordx2 v[{Q}:{Q+1}], v7, s[{sWS}:{sWS+3}], s58 offen sc1", "stats")
    assert not perm_jobs or cfg.stage < 2
    stamp(3)
    reduce_scatter(ACC, 24)
    a("s_waitcnt vmcnt(0)")
    ops.clear()
    a(f"v_mov_b32 v{Q+2}, v{Q}")
    allreduce_row("v_max_f32", Q + 2)
    a(f"v_sub_f32 v{Q}, v{Q}, v{Q+2}\nv_exp_f32 v{Q}, v{Q}\nv_mul_f32 v{Q}, v{Q}, v{Q+1}")
    allreduce_row("v_add_f32", Q)
    a(f"v_sub_f32 v12, v12, v{Q+2}\nv_exp_f32 v12, v12\nv_rcp_f32 v{Q}, v{Q}\nv_mul_f32 v12, v12, v{Q}")
    for i in range(3): a(f"v_mul_f32 v{ACC+i}, v{ACC+i}, v12")
    for i in range(3): a(f"ds_add_f32 v10, v{ACC+i} offset:{L_OACC+4*i}")
    a("s_waitcnt lgkmcnt(0)\ns_barrier")
    if cfg.stage == 1:
        a(f"""
        v_lshlrev_b32 v7, 2, v0
        v_cmp_gt_u32 vcc, 192, v0
        s_and_saveexec_b64 s[56:57], vcc
        s_cbranch_execz L_end
        ds_read_b32 v8, v7 offset:{L_OACC}
        ds_read_b32 v9, v7 offset:{L_QACC}
        s_lshl_b32 s58, s2, 11
        s_add_u32 s58, s58, {WS_DBG}
        s_waitcnt lgkmcnt(0)
        buffer_store_dword v8, v7, s[{sWS}:{sWS+3}], s58 offen
        buffer_store_dword v9, v7, s[{sWS}:{sWS+3}], s58 offen offset:1024
        """)
        a.label("L_end"); a("s_endpgm")
        return a
    OF = SC
    OP = Q
    YM = KB + 8; YE = KB + 16
    a(f"v_mul_u32_u24 v7, 96, v2\ns_lshl_b32 s58, s62, 2\nv_add_u32 v8, s58, v7")
    for i in range(3): a(f"ds_read_b64 v[{OF+24+2*i}:{OF+25+2*i}], v8 offset:{L_OACC+8*i}")
    for i in range(6): a(f"ds_read_b128 v[{OF+4*i}:{OF+4*i+3}], v7 offset:{L_OACC+16*i}")
    for i in range(8): a(f"v_mov_b32 v{YM+i}, 0\nv_mov_b32 v{YE+i}, 0")
    a("s_waitcnt lgkmcnt(6)")
    for i in range(3): a(f"v_cvt_pk_bf16_f32 v{KB+i}, v{OF+24+2*i}, v{OF+25+2*i}")
    for u in range(3):
        for k in range(4):
            a(f"v_dot2c_f32_bf16 v{YE+2*k}, v{plo[(12+u,k)]}, v{KB+u}\nv_dot2c_f32_bf16 v{YE+2*k+1}, v{phi[(12+u,k)]}, v{KB+u}")
    a("s_waitcnt lgkmcnt(0)")
    for i in range(12): a(f"v_cvt_pk_bf16_f32 v{OP+i}, v{OF+2*i}, v{OF+2*i+1}")
    reduce_scatter(YE, 8)
    a(f"v_lshlrev_b32 v9, 5, v3\nv_lshl_add_u32 v9, v2, 2, v9\ns_lshr_b32 s58, s3, 2\ns_lshl_b32 s58, s58, 8\nv_add_u32 v7, s58, v9")
    a(f"ds_add_f32 v7, v{YE} offset:{L_YEX}")
    for u in range(12):
        for k in range(4):
            a(f"v_dot2c_f32_bf16 v{YM+2*k}, v{plo[(u,k)]}, v{OP+u}\nv_dot2c_f32_bf16 v{YM+2*k+1}, v{phi[(u,k)]}, v{OP+u}")
    reduce_scatter(YM, 8)
    a(f"""
    s_and_b32 s58, s44, {cfg.R-1}
    s_mul_i32 s58, s58, 10240
    s_mul_i32 s59, s45, 2560
    s_add_u32 s63, s58, s59
    s_lshl_b32 s58, s3, 8
    s_add_u32 s58, s58, s63
    buffer_atomic_add_f32 v{YM}, v9, s[{sWS}:{sWS+3}], s58 offen offset:{WS_ATT}
    s_waitcnt lgkmcnt(0)
    s_barrier
    s_cmp_ge_u32 s3, 2
    s_cbranch_scc1 L_noex
    s_lshl_b32 s58, s3, 8
    v_lshlrev_b32 v7, 2, v1
    v_add_u32 v8, s58, v7
    ds_read_b32 v8, v8 offset:{L_YEX}
    s_add_u32 s58, s58, s63
    s_waitcnt lgkmcnt(0)
    buffer_atomic_add_f32 v8, v7, s[{sWS}:{sWS+3}], s58 offen offset:{WS_ATT+2048}
    """)
    a.label("L_noex")
    a(f"""
    s_waitcnt vmcnt(0)
    v_mov_b32 v7, {L_CNT+4}
    v_mov_b32 v8, 1
    s_mov_b64 exec, 1
    ds_add_rtn_u32 v9, v7, v8
    s_waitcnt lgkmcnt(0)
    v_readfirstlane_b32 s58, v9
    s_cmp_lg_u32 s58, 7
    s_cbranch_scc1 L_nosig1
    v_mov_b32 v7, 64
    buffer_atomic_add v8, v7, s[{sDBG}:{sDBG+3}], 0 offen
    """)
    a.label("L_nosig1")
    a("s_mov_b64 exec, -1")
    stamp(4)
    def finish():
        if cfg.diag:
            a(f"""
            s_lshl_b32 s58, s2, 3
            s_add_u32 s58, s58, s3
            s_lshl_b32 s58, s58, 6
            s_add_u32 s58, s58, {WS_DBG}
            s_getreg_b32 s59, hwreg(HW_REG_XCC_ID)
            v_writelane_b32 v15, s59, 15
            v_lshlrev_b32 v7, 2, v1
            s_mov_b64 exec, 0xffff
            buffer_store_dword v15, v7, s[{sWS}:{sWS+3}], s58 offen
            """)
        a("s_endpgm")
    if cfg.stage == 2:
        finish()
        a.label("L_end"); a("s_endpgm")
        return a
    a(f"s_cmp_lt_u32 s51, {NFFN//8}\ns_cbranch_scc1 L_ffn")
    finish()
    a.label("L_ffn")
    a(f"""
    s_mul_i32 s55, s50, {NFFN//8}
    s_add_u32 s55, s55, s51
    s_and_b32 s58, s3, 1
    s_cmp_eq_u32 s58, 0
    s_cselect_b32 s{sGU}, s76, s78
    s_cselect_b32 s{sGU+1}, s77, s79
    s_mov_b32 s{sGU+2}, {640*1536*2}
    s_mov_b32 s{sGU+3}, 0x00020000
    """)
    srd(sWD, 80, 1536 * 640 * 2)
    srd(sOUT, 82, 5120)
    a(f"""
    v_lshrrev_b32 v7, 1, v1
    v_mul_u32_u24 v7, 3072, v7
    v_and_b32 v8, 1, v1
    v_lshl_add_u32 v16, v8, 4, v7
    v_lshlrev_b32 v22, 3, v1
    v_lshlrev_b32 v23, 2, v1
    """)
    for i in range(3):
        a(f"""
        v_add_u32 v7, {64*i}, v1
        v_min_u32 v7, 159, v7
        v_mul_u32_u24 v8, 0xcccd, v7
        v_lshrrev_b32 v8, 19, v8
        v_mul_u32_u24 v9, 10, v8
        v_sub_u32 v9, v7, v9
        v_mul_u32_u24 v8, 1280, v8
        v_lshl_add_u32 v{17+i}, v9, 4, v8
        """)
    def dma_for(wreg_expr_s):
        w = wreg_expr_s
        a(f"""
        s_lshr_b32 s58, s{w}, 1
        s_mul_i32 s58, s58, {160*3072}
        s_lshl_b32 s59, s55, 5
        s_add_u32 s58, s58, s59
        s_mul_i32 s59, s{w}, 5120
        s_add_u32 s59, s59, {L_WGU}
        """)
        for i in range(5):
            a(f"s_mov_b32 m0, s59\nbuffer_load_dwordx4 v16, s[{sGU}:{sGU+3}], s58 offen lds")
            if i < 4: a(f"s_add_u32 s58, s58, {32*3072}\ns_add_u32 s59, s59, 1024")
        a(f"""
        s_mul_i32 s58, s55, {16*1280}
        s_mul_i32 s59, s{w}, 160
        s_add_u32 s58, s58, s59
        s_mul_i32 s59, s{w}, 3072
        s_add_u32 s59, s59, {L_WD}
        """)
        for i in range(3):
            a(f"s_mov_b32 m0, s59\nbuffer_load_dwordx4 v{17+i}, s[{sWD}:{sWD+3}], s58 offen lds")
            if i < 2: a("s_add_u32 s59, s59, 1024")
    BG = 140
    BD = 160
    def tr_reads():
        a(f"""
        v_lshrrev_b32 v7, 4, v1
        v_bfe_u32 v8, v1, 2, 2
        v_and_b32 v9, 3, v1
        v_lshlrev_b32 v20, 8, v7
        v_lshl_add_u32 v20, v8, 5, v20
        v_lshl_add_u32 v20, v9, 3, v20
        s_mul_i32 s58, s3, 5120
        v_add_u32 v20, s58, v20
        v_lshl_add_u32 v21, v7, 2, v8
        v_mul_u32_u24 v21, 160, v21
        v_lshl_add_u32 v21, v9, 3, v21
        s_mul_i32 s58, s3, 3072
        v_add_u32 v21, s58, v21
        """)
        for s in range(5):
            for hf in range(2):
                a(f"ds_read_b64_tr_b16 v[{BG+4*s+2*hf}:{BG+4*s+2*hf+1}], v20 offset:{L_WGU+1024*s+128*hf}")
        for i in range(5):
            a(f"ds_read_b64_tr_b16 v[{BD+2*i}:{BD+2*i+1}], v21 offset:{L_WD+32*i}")
        a("s_waitcnt lgkmcnt(0)")
    a("s_cmp_eq_u32 s3, 4\ns_cbranch_scc1 L_poller")
    dma_for(3)
    a("s_cmp_lg_u32 s3, 6\ns_cbranch_scc1 L_nodma4\ns_mov_b32 s62, 4")
    dma_for(62)
    a.label("L_nodma4")
    XR = 24
    a(f"""
    s_and_b32 s58, s3, 3
    s_mul_i32 s58, s58, 1280
    buffer_load_dwordx2 v[{XR}:{XR+1}], v22, s[{sX}:{sX+3}], s58 offen
    buffer_load_dwordx2 v[{XR+2}:{XR+3}], v22, s[{sX}:{sX+3}], s58 offen offset:512
    buffer_load_dword v{XR+4}, v23, s[{sX}:{sX+3}], s58 offen offset:1024
    s_waitcnt vmcnt(0)
    """)
    tr_reads()
    a("s_barrier\ns_branch L_afterB1")
    a.label("L_poller")
    spin("c1spin", 64, 256)
    a("s_barrier")
    tr_reads()
    a.label("L_afterB1")
    stamp(5)
    a("s_cmp_ge_u32 s3, 4\ns_cbranch_scc1 L_noln")
    HV = 32; AR = 44
    a(f"s_mul_i32 s58, s3, 2560\nv_lshlrev_b32 v7, 4, v1")
    for r in range(cfg.R):
        b0 = AR + 12 * r
        a(f"""buffer_load_dwordx4 v[{b0}:{b0+3}], v7, s[{sWS}:{sWS+3}], s58 offen offset:0 sc1
        buffer_load_dwordx4 v[{b0+4}:{b0+7}], v7, s[{sWS}:{sWS+3}], s58 offen offset:1024 sc1
        buffer_load_dwordx2 v[{b0+8}:{b0+9}], v22, s[{sWS}:{sWS+3}], s58 offen offset:2048 sc1""")
        if r < cfg.R - 1: a("s_add_u32 s58, s58, 10240")
    for i in range(5):
        a(f"v_lshlrev_b32 v{HV+2*i}, 16, v{XR+i}\nv_and_b32 v{HV+2*i+1}, 0xffff0000, v{XR+i}")
    for r in range(cfg.R):
        a(f"s_waitcnt vmcnt({3*(cfg.R-1-r)})")
        for i in range(10): a(f"v_add_f32 v{HV+i}, v{HV+i}, v{AR+12*r+i}")
    a(f"""
    s_mul_i32 s58, s3, 2560
    v_add_u32 v8, s58, v7
    v_add_u32 v9, s58, v22
    ds_write_b128 v8, v[{HV}:{HV+3}] offset:{L_H}
    ds_write_b128 v8, v[{HV+4}:{HV+7}] offset:{L_H+1024}
    ds_write_b64 v9, v[{HV+8}:{HV+9}] offset:{L_H+2048}
    """)
    layernorm10(HV, AR)
    for i in range(5): a(f"v_cvt_pk_bf16_f32 v{XR+i}, v{HV+2*i}, v{HV+2*i+1}")
    a(f"""
    s_mul_i32 s58, s3, 1280
    v_add_u32 v8, s58, v22
    v_add_u32 v9, s58, v23
    ds_write_b64 v8, v[{XR}:{XR+1}] offset:{L_HN}
    ds_write_b64 v8, v[{XR+2}:{XR+3}] offset:{L_HN+512}
    ds_write_b32 v9, v{XR+4} offset:{L_HN+1024}
    s_waitcnt lgkmcnt(0)
    """)
    a.label("L_noln")
    a("s_barrier")
    AF = 96; DG = 116
    a(f"""
    v_bfe_u32 v7, v1, 2, 2
    v_mul_u32_u24 v7, 1280, v7
    v_lshrrev_b32 v8, 4, v1
    v_lshl_add_u32 v7, v8, 4, v7
    s_lshr_b32 s58, s3, 1
    s_mul_i32 s58, s58, 320
    v_add_u32 v7, s58, v7
    """)
    for s in range(5): a(f"ds_read_b128 v[{AF+4*s}:{AF+4*s+3}], v7 offset:{L_HN+64*s}")
    for i in range(4): a(f"v_mov_b32 v{DG+i}, 0")
    a(f"s_and_b32 s58, s3, 1\ns_lshl_b32 s58, s58, 8\nv_lshlrev_b32 v9, 2, v1\nv_add_u32 v9, s58, v9")
    for s in range(5):
        a(f"s_waitcnt lgkmcnt({4-s})")
        a(f"v_mfma_f32_16x16x32_bf16 v[{DG}:{DG+3}], v[{AF+4*s}:{AF+4*s+3}], v[{BG+4*s}:{BG+4*s+3}], v[{DG}:{DG+3}]")
    a(f"ds_add_f32 v9, v{DG} offset:{L_GU}\ns_waitcnt lgkmcnt(0)\ns_barrier")
    a(f"""
    v_bfe_u32 v7, v1, 2, 2
    v_lshlrev_b32 v7, 6, v7
    v_lshl_add_u32 v7, v8, 4, v7
    v_and_b32 v9, 3, v1
    v_lshl_add_u32 v7, v9, 2, v7
    ds_read_b32 v24, v7 offset:{L_GU}
    ds_read_b32 v25, v7 offset:{L_GU+256}
    """)
    DD = 120
    for i in range(20): a(f"v_mov_b32 v{DD+i}, 0")
    a(f"""
    s_waitcnt lgkmcnt(0)
    v_mul_f32 v26, {hex(f2u(-math.log2(math.e)))}, v24
    v_exp_f32 v26, v26
    v_add_f32 v26, 1.0, v26
    v_rcp_f32 v26, v26
    v_mul_f32 v24, v24, v25
    v_mul_f32 v24, v24, v26
    v_mov_b32_dpp v28, v24 quad_perm:[0,0,0,0] row_mask:0xf bank_mask:0xf
    v_mov_b32_dpp v29, v24 quad_perm:[1,1,1,1] row_mask:0xf bank_mask:0xf
    v_mov_b32_dpp v30, v24 quad_perm:[2,2,2,2] row_mask:0xf bank_mask:0xf
    v_mov_b32_dpp v31, v24 quad_perm:[3,3,3,3] row_mask:0xf bank_mask:0xf
    v_cvt_pk_bf16_f32 v26, v28, v29
    v_cvt_pk_bf16_f32 v27, v30, v31
    """)
    for i in range(5):
        a(f"v_mfma_f32_16x16x16_bf16 v[{DD+4*i}:{DD+4*i+3}], v[{BD+2*i}:{BD+2*i+1}], v[26:27], v[{DD+4*i}:{DD+4*i+3}]")
    a(f"""
    v_bfe_u32 v7, v1, 2, 2
    v_mul_u32_u24 v7, 2560, v7
    v_lshl_add_u32 v7, v8, 4, v7
    s_mul_i32 s58, s55, 10240
    s_mul_i32 s59, s3, 320
    s_add_u32 s58, s58, s59
    s_add_u32 s58, s58, {WS_FFN}
    s_mov_b32 s56, 0x11111111
    s_mov_b32 s57, 0x11111111
    s_mov_b64 exec, s[56:57]
    """)
    for i in range(5):
        a(f"buffer_store_dwordx4 v[{DD+4*i}:{DD+4*i+3}], v7, s[{sWS}:{sWS+3}], s58 offen offset:{64*i} sc1")
    a(f"""
    s_waitcnt vmcnt(0)
    v_mov_b32 v7, {L_CNT+8}
    v_mov_b32 v9, 1
    s_mov_b64 exec, 1
    ds_add_rtn_u32 v24, v7, v9
    s_waitcnt lgkmcnt(0)
    v_readfirstlane_b32 s58, v24
    s_cmp_lg_u32 s58, 7
    s_cbranch_scc1 L_nosig2
    v_mov_b32 v7, 128
    buffer_atomic_add v9, v7, s[{sDBG}:{sDBG+3}], 0 offen
    """)
    a.label("L_nosig2")
    a("s_mov_b64 exec, -1")
    stamp(6)
    a(f"s_cmp_lt_u32 s51, {NRED//8}\ns_cbranch_scc1 L_red")
    finish()
    a.label("L_red")
    a("s_cmp_lg_u32 s3, 4\ns_cbranch_scc1 L_nopoll2")
    spin("c2spin", 128, NFFN)
    a.label("L_nopoll2")
    a("s_barrier")
    stamp(7)
    a(f"""
    s_mul_i32 s62, s50, {NRED//8}
    s_add_u32 s62, s62, s51
    s_lshl_b32 s62, s62, 8
    s_mul_i32 s58, s3, {12*10240}
    s_add_u32 s58, s58, s62
    s_add_u32 s58, s58, {WS_FFN}
    v_lshlrev_b32 v7, 2, v1
    """)
    for i in range(12):
        a(f"buffer_load_dword v{24+i}, v7, s[{sWS}:{sWS+3}], s58 offen sc1")
        if i < 11: a("s_add_u32 s58, s58, 10240")
    a("s_waitcnt vmcnt(0)")
    for i in range(1, 12): a(f"v_add_f32 v24, v24, v{24+i}")
    a(f"""
    ds_add_f32 v7, v24 offset:{L_FIN}
    s_waitcnt lgkmcnt(0)
    s_barrier
    s_cmp_lg_u32 s3, 0
    s_cbranch_scc1 L_fin
    v_add_u32 v8, s62, v7
    ds_read_b32 v24, v7 offset:{L_FIN}
    ds_read_b32 v25, v8 offset:{L_H}
    s_lshr_b32 s62, s62, 1
    v_lshlrev_b32 v7, 1, v1
    s_waitcnt lgkmcnt(0)
    v_add_f32 v24, v24, v25
    v_cvt_pk_bf16_f32 v24, v24, v24
    buffer_store_short v24, v7, s[{sOUT}:{sOUT+3}], s62 offen
    """)
    a.label("L_fin")
    stamp(8)
    finish()
    a.label("L_end")
    a("s_endpgm")
    return a

HEADER = open("sequential_preLN__gqa_block_cached__swiglu_ffn__decode.s.ref").read().split("; Override")[0]

def make(cfg, path):
    a = gen(cfg)
    s = HEADER + f"; @launch grid=(256,1,1) block=(512,1,1) lds={LDS_BYTES}\n" + '.amdgcn_target "amdgcn-amd-amdhsa--gfx950"\n' + kernel_text(KNAME, a.text(), 256, sgpr=96)
    open(path, "w").write(s)
    return build(path)

if __name__ == "__main__":
    cfg = Cfg()
    out = sys.argv[1] if len(sys.argv) > 1 else "main.s"
    for kv in sys.argv[2:]:
        k, v = kv.split("=")
        setattr(cfg, k, type(getattr(cfg, k))(int(v)))
    print(make(cfg, out))
```
